```python
import torch

def _softmax(x, axis=-1):
    return torch.softmax(x, dim=axis)
def _gelu(x):
    return torch.nn.functional.gelu(x, approximate="tanh")
def _silu(x):
    return torch.nn.functional.silu(x)
def _sigmoid(x):
    return torch.sigmoid(x)
def _layernorm(x, axis=-1, eps=1e-5):
    m = x.mean(dim=axis, keepdim=True)
    v = x.var(dim=axis, keepdim=True, unbiased=False)
    return (x - m) / torch.sqrt(v + eps)
def _scatter_add(tgt, idx, src, axis=0):
    return tgt.clone().index_add_(axis, idx, src)
def _segment_sum(src, seg, n):
    out = torch.zeros((n,) + src.shape[1:], dtype=src.dtype)
    return out.index_add_(0, seg, src)
def _pad(x, pw):
    flat = tuple(v for pair in reversed(pw) for v in pair)
    return torch.nn.functional.pad(x, flat)

kernel_name = 'standalone__dcn_v2_cross__recsys'

def setup_inputs():

    _w = (lambda a: (lambda t: t.to(torch.bfloat16) if t.is_floating_point() else t)(torch.as_tensor(a)))
    B, F, D, L = 16384, 100, 64, 3
    Din = min(F * D, 1024)
    return {
        "x0": _w((lambda *s: torch.randn(*s, dtype=torch.bfloat16) * 0.05)(B, Din)),
        "ws": _w((lambda *s: torch.randn(*s, dtype=torch.bfloat16) * 0.05)(L, Din, Din)),
        "bs": _w((lambda *s: torch.randn(*s, dtype=torch.bfloat16) * 0.05)(L, Din)),
    }

def reference(x0, ws, bs):
    x = x0
    for l in range(ws.shape[0]):
        x = x0 * (x @ ws[l] + bs[l]) + x
    return x
```

```python
import sys, argparse

HDR = """; Kernarg layout for this problem (48 bytes, ptrs only, base s[0:1]):
"""

class G:
    def __init__(self):
        self.lines = []
        self.vmq = []
        self.lgq = []
        self.lg_dirty = False
        self.n = 0
    def e(self, s):
        self.lines.append(s); self.n += 1
    def vm(self, s, tag):
        self.e(s); self.vmq.append(tag)
        assert len(self.vmq) <= 63, len(self.vmq)
    def lg(self, s, tag):
        self.e(s); self.lgq.append(tag)
        assert len(self.lgq) <= 15, self.lgq
    def need(self, vm=None, lg=None):
        parts = []
        if vm:
            idx = max([self.vmq.index(t) for t in vm if t in self.vmq], default=-1)
            if idx >= 0:
                n = len(self.vmq) - 1 - idx
                self.vmq = self.vmq[idx+1:]
                parts.append(f"vmcnt({n})")
        if lg:
            idx = max([self.lgq.index(t) for t in lg if t in self.lgq], default=-1)
            if idx >= 0:
                if self.lg_dirty:
                    n = 0; self.lgq = []; self.lg_dirty = False
                else:
                    n = len(self.lgq) - 1 - idx
                    self.lgq = self.lgq[idx+1:]
                parts.append(f"lgkmcnt({n})")
        if parts:
            self.e("s_waitcnt " + " ".join(parts))
            return True
        return False
    def drain_lg(self):
        if self.lgq or self.lg_dirty:
            self.e("s_waitcnt lgkmcnt(0)")
        self.lgq = []; self.lg_dirty = False

def r4(cls, b): return f"{cls}[{b}:{b+3}]"

def gen_pre(g):
    e = g.e
    e(".globl wt_kernel"); e(".p2align 8"); e(".type wt_kernel,@function"); e("wt_kernel:")
    e("s_cmp_ge_u32 s2, 192"); e("s_cbranch_scc1 L_wt_done")
    e("s_load_dwordx2 s[4:5], s[0:1], 8"); e("s_load_dwordx2 s[6:7], s[0:1], 40")
    e("v_lshrrev_b32 v1, 6, v0")
    e("v_and_b32 v0, 63, v0")
    e("v_readfirstlane_b32 s3, v1")
    e("s_lshr_b32 s16, s2, 6")
    e("s_bfe_u32 s17, s2, 0x10004")
    e("s_bfe_u32 s18, s2, 0x10005")
    e("s_and_b32 s19, s2, 15")
    e("s_lshl_b32 s18, s18, 4"); e("s_add_u32 s18, s18, s19")
    e("s_lshl_b32 s17, s17, 2"); e("s_add_u32 s17, s17, s3")
    e("s_lshl_b32 s20, s16, 21"); e("s_lshl_b32 s21, s18, 16"); e("s_add_u32 s20, s20, s21")
    e("s_lshl_b32 s21, s17, 8"); e("s_add_u32 s20, s20, s21")
    e("s_mul_i32 s22, s3, 192"); e("s_add_u32 s22, s22, s2"); e("s_lshl_b32 s22, s22, 13")
    e("v_lshrrev_b32 v2, 4, v0"); e("v_and_b32 v3, 15, v0")
    e("v_lshlrev_b32 v4, 14, v2"); e("v_lshlrev_b32 v5, 4, v3"); e("v_add_u32 v4, v4, v5")
    e("v_add_u32 v5, 4096, v4"); e("v_add_u32 v6, 0x2000, v4"); e("v_add_u32 v7, 0x3000, v4")
    e("v_lshrrev_b32 v8, 2, v3"); e("v_lshlrev_b32 v8, 11, v8")
    e("v_lshlrev_b32 v9, 8, v2"); e("v_add_u32 v8, v8, v9")
    e("v_and_b32 v9, 3, v3"); e("v_lshlrev_b32 v9, 6, v9"); e("v_add_u32 v8, v8, v9")
    e("s_waitcnt lgkmcnt(0)")
    e("s_mov_b32 s8, s4"); e("s_mov_b32 s9, s5"); e("s_mov_b32 s10, 0x600000"); e("s_mov_b32 s11, 0x20000")
    e("s_mov_b32 s12, s6"); e("s_mov_b32 s13, s7"); e("s_mov_b32 s14, 0x600000"); e("s_mov_b32 s15, 0x20000")
    for s in range(8):
        e(f"buffer_load_dwordx4 v[{16+4*s}:{19+4*s}], v{4+s//2}, s[8:11], s20 offen offset:{(s&1)*2048}")
    e("s_mov_b32 s24, 0x05040100"); e("s_mov_b32 s25, 0x07060302")
    e("s_waitcnt vmcnt(0)")
    for el in range(8):
        for d in range(4):
            lo = 16 + 4*(2*d) + el//2
            hi = 16 + 4*(2*d+1) + el//2
            sel = "s24" if el % 2 == 0 else "s25"
            e(f"v_perm_b32 v{48+4*el+d}, v{hi}, v{lo}, {sel}")
    for el in range(8):
        e(f"buffer_store_dwordx4 v[{48+4*el}:{51+4*el}], v8, s[12:15], s22 offen offset:{(el>>2)*1024+(el&3)*16}")
    e("L_wt_done:")
    e("s_endpgm")

def gen_main(g, o):
    e = g.e
    D = o.depth
    NAME = "standalone__dcn_v2_cross__recsys_kernel"
    if o.accmode == "mixed":
        Wc, Wb = "a", 0
        Xc, Xb = "a", D*32
        a_free = D*32 + 32
        v_acc0 = 64
        quads = []
        nv = (256 - v_acc0)//4
        na = (256 - a_free)//4
        assert nv + na >= 64, (nv, na)
        accmap = {}
        vi = 0; ai = 0
        for p in range(2):
            for mt in range(4):
                for u in range(8):
                    if mt < 3:
                        accmap[(p,mt,u)] = ("v", v_acc0 + 4*vi); vi += 1
                    else:
                        accmap[(p,mt,u)] = ("a", a_free + 4*ai); ai += 1
        vtmp = 8
    else:
        Wc, Wb = "v", 256 - D*32
        Xc, Xb = "v", 256 - D*32 - 32
        assert Xb >= 64
        accmap = {}
        i = 0
        for p in range(2):
            for mt in range(4):
                for u in range(8):
                    accmap[(p,mt,u)] = ("a", 4*i); i += 1
        vtmp = 8
    def Wr(t,u): return r4(Wc, Wb + (t % D)*32 + 4*u)
    def Xr(t,mt): return r4(Xc, Xb + (t % 2)*16 + 4*mt)
    vW0, vW1, vL0, vL1, vLW0, vLW1, vX0, vB = 1, 2, 3, 4, 5, 6, 7, 0
    XT = 8
    NXT = 8
    TF = XT + 4*NXT
    BT = TF + 8
    BF = BT + 4
    vDMA = 60
    sX, sWp, sBs, sO = 8, 12, 16, 20
    sWoff = 24
    sMT = [25, 26, 27, 28]
    sMask = 29
    sBoff = 30
    sWave = 31
    ST = 40
    nst = [0]
    def stamp(real=False):
        if o.stamps:
            i = nst[0]; nst[0] += 1
            assert ST + 2*i + 1 < 100
            e(f"s_memtime s[{ST+2*i}:{ST+2*i+1}]")
            if real:
                i = nst[0]; nst[0] += 1
                e(f"s_memrealtime s[{ST+2*i}:{ST+2*i+1}]")
            g.lg_dirty = True

    e(f".globl {NAME}"); e(".p2align 8"); e(f".type {NAME},@function"); e(f"{NAME}:")
    e("s_cmp_ge_u32 s2, 256"); e("s_cbranch_scc0 L_go"); e("s_endpgm"); e("L_go:")
    stamp(True)
    e("s_load_dwordx4 s[4:7], s[0:1], 0")
    e("s_load_dwordx4 s[32:35], s[0:1], 16")
    e("s_load_dwordx2 s[36:37], s[0:1], 40")
    e("v_lshrrev_b32 v1, 6, v0")
    e("v_and_b32 v0, 63, v0")
    e(f"v_readfirstlane_b32 s{sWave}, v1")
    e("v_lshrrev_b32 v10, 4, v0")
    e("v_and_b32 v11, 15, v0")
    e(f"v_lshlrev_b32 v{vW0}, 4, v0")
    e(f"v_add_u32 v{vW1}, 4096, v{vW0}")
    e(f"v_mov_b32 v{vL0}, v{vW0}")
    e(f"v_add_u32 v{vL1}, 0x10000, v{vW0}")
    e(f"s_lshl_b32 s3, s{sWave}, 14")
    e(f"v_add_u32 v{vLW0}, s3, v{vL0}")
    e(f"v_add_u32 v{vLW1}, s3, v{vL1}")
    e("v_lshlrev_b32 v10, 4, v10")
    e("v_lshlrev_b32 v11, 11, v11")
    e(f"s_lshl_b32 s3, s{sWave}, 8")
    e(f"v_add_u32 v{vB}, s3, v10")
    e(f"v_add_u32 v{vX0}, v11, v{vB}")
    e(f"s_lshl_b32 s3, s{sWave}, 15")
    e(f"v_add_u32 v{vDMA}, v10, v11")
    e(f"v_add_u32 v{vDMA}, s3, v{vDMA}")
    e(f"s_mul_i32 s{sWoff}, s{sWave}, {192*8192}")
    for mt in range(4): e(f"s_mov_b32 s{sMT[mt]}, {mt*32768}")
    e(f"s_mov_b32 s{sMask}, 0xffff0000")
    e(f"s_lshl_b32 s3, s{sWave}, 10")
    e("s_mov_b32 m0, s3")
    e("s_lshl_b32 s38, s2, 17")
    e("s_waitcnt lgkmcnt(0)")
    g.lg_dirty = False
    e(f"s_add_u32 s{sX}, s4, s38"); e(f"s_addc_u32 s{sX+1}, s5, 0"); e(f"s_mov_b32 s{sX+2}, 0x20000"); e(f"s_mov_b32 s{sX+3}, 0x20000")
    e(f"s_mov_b32 s{sWp}, s36"); e(f"s_mov_b32 s{sWp+1}, s37"); e(f"s_mov_b32 s{sWp+2}, 0x600000"); e(f"s_mov_b32 s{sWp+3}, 0x20000")
    e(f"s_mov_b32 s{sBs}, s32"); e(f"s_mov_b32 s{sBs+1}, s33"); e(f"s_mov_b32 s{sBs+2}, 6144"); e(f"s_mov_b32 s{sBs+3}, 0x20000")
    e(f"s_add_u32 s{sO}, s34, s38"); e(f"s_addc_u32 s{sO+1}, s35, 0"); e(f"s_mov_b32 s{sO+2}, 0x20000"); e(f"s_mov_b32 s{sO+3}, 0x20000")

    NT = 192
    woff_t = [0]
    def wload(t, u):
        if t >= NT or o.no_w: return
        if o.half_w and (u & 1): return
        assert woff_t[0] == t
        vv = vW0 if u < 4 else vW1
        g.vm(f"buffer_load_dwordx4 {Wr(t,u)}, v{vv}, s[{sWp}:{sWp+3}], s{sWoff} offen offset:{(u&3)*1024}", ("W",t,u))
    def wadv():
        woff_t[0] += 1
        if not o.no_w: e(f"s_add_u32 s{sWoff}, s{sWoff}, 0x2000")
    dma_c = [0]
    def dma(nop=False):
        c = dma_c[0]
        if c >= 32: return
        dma_c[0] += 1
        g.vm(f"buffer_load_dwordx4 v{vDMA}, s[{sX}:{sX+3}], 0 offen offset:{64*c} lds", ("DMA",c))
        e(f"s_add_u32 m0, m0, {4096-64}")
        if nop: e("s_nop 0")
    def step_info(t):
        l = t // 64; ph = (t // 16) & 3; kk = t & 15
        p = ph & 1; h = ph >> 1
        return l, ph, kk, p, h
    def xread(t, mt):
        if t >= NT: return
        l, ph, kk, p, h = step_info(t)
        vv = vL0 if h == 0 else vL1
        g.lg(f"ds_read_b128 {Xr(t,mt)}, v{vv} offset:{kk*4096+mt*1024}", ("X",t,mt))

    def acc_reg(p, mt, u, r):
        c, b = accmap[(p,mt,u)]
        return c, b + r
    unit_ctr = [0]
    def x0load(l, p, mt, a, slot):
        g.vm(f"buffer_load_dwordx4 {r4('v', XT+4*slot)}, v{vX0}, s[{sX}:{sX+3}], s{sMT[mt]} offen offset:{1024*p+64*a}", ("X0",l,p,mt,a))
    def unit_ops(l, p, mt, a, slot):
        ops = []
        xt = XT + 4*slot
        ops.append(lambda: g.need(vm=[("X0",l,p,mt,a)]))
        for half in range(2):
            u = 2*a + half
            f = TF
            c, b = accmap[(p,mt,u)]
            i0, i1 = xt + 2*half, xt + 2*half + 1
            src = [b, b+1, b+2, b+3]
            if c == "a":
                for r in range(4):
                    ops.append(lambda r=r, b=b: e(f"v_accvgpr_read_b32 v{f+4+r}, a{b+r}"))
                src = [f+4, f+5, f+6, f+7]
            ops.append(lambda i0=i0: e(f"v_lshlrev_b32 v{f}, 16, v{i0}"))
            ops.append(lambda i0=i0: e(f"v_and_b32 v{f+1}, s{sMask}, v{i0}"))
            ops.append(lambda i1=i1: e(f"v_lshlrev_b32 v{f+2}, 16, v{i1}"))
            ops.append(lambda i1=i1: e(f"v_and_b32 v{f+3}, s{sMask}, v{i1}"))
            for r in range(4):
                ops.append(lambda r=r, s=src[r]: e(f"v_mul_f32 v{f+r}, v{f+r}, v{s}"))
            ops.append(lambda i0=i0: e(f"v_cvt_pk_bf16_f32 v{i0}, v{f}, v{f+1}"))
            ops.append(lambda i1=i1: e(f"v_cvt_pk_bf16_f32 v{i1}, v{f+2}, v{f+3}"))
        if l < 2:
            vv = vLW0 if p == 0 else vLW1
            ops.append(lambda: g.lg(f"ds_write_b128 v{vv}, {r4('v',xt)} offset:{a*4096+mt*1024}", ("XW",l,p,mt,a)))
        else:
            ops.append(lambda: g.vm(f"buffer_store_dwordx4 {r4('v',xt)}, v{vX0}, s[{sO}:{sO+3}], s{sMT[mt]} offen offset:{1024*p+64*a}", ("ST",p,mt,a)))
        return ops
    def slot_free_wait(l, p, mt, a):
        if not o.slotwait: return lambda: None
        if l < 2: return lambda: g.need(lg=[("XW",l,p,mt,a)])
        else: return lambda: g.need(vm=[("ST",p,mt,a)])
    def epi_plan(l, p):
        units = [(mt,a) for a in range(4) for mt in range(4)]
        pre = []; ops = []
        for i,(mt,a) in enumerate(units[:NXT]):
            pre.append(lambda mt=mt,a=a,i=i: x0load(l,p,mt,a,i))
        for i,(mt,a) in enumerate(units):
            ops += unit_ops(l,p,mt,a,i % NXT)
            j = i - 1 + NXT
            if i >= 1 and j < 16:
                pm, pa = units[i-1]
                ops.append(slot_free_wait(l,p,pm,pa))
                mm, aa = units[j]
                ops.append(lambda mm=mm,aa=aa,j=j: x0load(l,p,mm,aa,j % NXT))
        return pre, ops
    def bias_plan(l, p):
        ops = []
        ops.append(lambda: e(f"s_mov_b32 s{sBoff}, {l*2048+p*1024}"))
        for a in range(4):
            ops.append(lambda a=a: g.vm(f"buffer_load_dwordx4 {r4('v',XT+4*a)}, v{vB}, s[{sBs}:{sBs+3}], s{sBoff} offen offset:{64*a}", ("B",l,p,a)))
        ops2 = []
        for a in range(4):
            ops2.append(lambda a=a: g.need(vm=[("B",l,p,a)]))
            for i in range(4):
                ops2.append(lambda a=a,i=i: e(f"v_lshlrev_b32 v{BF+2*i}, 16, v{XT+4*a+i}"))
                ops2.append(lambda a=a,i=i: e(f"v_and_b32 v{BF+2*i+1}, s{sMask}, v{XT+4*a+i}"))
            for mt in range(4):
                for el in range(8):
                    c, r = acc_reg(p, mt, 2*a + (el>>2), el & 3)
                    if c == "v":
                        ops2.append(lambda r=r,el=el: e(f"v_add_f32 v{r}, v{r}, v{BF+el}"))
                    else:
                        ops2.append(lambda r=r,el=el: e(f"v_accvgpr_read_b32 v{TF+el}, a{r}"))
                if accmap[(p,mt,2*a)][0] == "a":
                    for el in range(8):
                        ops2.append(lambda el=el: e(f"v_add_f32 v{TF+el}, v{TF+el}, v{BF+el}"))
                    for el in range(8):
                        c, r = acc_reg(p, mt, 2*a + (el>>2), el & 3)
                        ops2.append(lambda r=r,el=el: e(f"v_accvgpr_write_b32 a{r}, v{TF+el}"))
        return ops, ops2

    GRP = o.grp
    for i in range(GRP): dma(True)
    for t in range(D):
        for u in range(8): wload(t, u)
        wadv()
        if t < o.dma_init_groups - 1:
            for i in range(GRP): dma(True)
    g.need(vm=[("DMA",GRP-1)])
    e("s_barrier")
    for mt in range(4): xread(0, mt)

    for t0 in range(0, NT, 16):
        l, ph, _, p, h = step_info(t0)
        stamp()
        fill = []
        def spread(ops, g0, g1):
            n = len(ops)
            for i,fn in enumerate(ops):
                fill.append((g0 + (g1-g0)*i//max(n,1), fn))
        if not o.no_epi:
            if ph == 0 and l > 0:
                pre, ops = epi_plan(l-1, 1)
                spread(ops, 12, 16*32-8)
            if ph == 3:
                pre, ops = epi_plan(l, 0)
                spread(ops, 4, 14*32+24)
                pre2, _ = epi_plan(l, 1)
                lastw = [slot_free_wait(l,0,3,3)]
                spread(lastw + pre2, 15*32+2, 15*32+28)
            if ph == 1:
                o1, o2 = bias_plan(l, 0)
                spread(o1, 8, 20); spread(o2, 5*32, 14*32)
            if ph == 2:
                o1, o2 = bias_plan(l, 1)
                spread(o1, 8, 20); spread(o2, 5*32, 12*32)
                pre, _ = epi_plan(l, 0)
                spread(pre, 12*32+4, 15*32)
        fill.sort(key=lambda x: x[0])
        fi = 0
        for kk in range(16):
            t = t0 + kk
            for m in range(32):
                u, mt = m // 4, m % 4
                gap = kk*32 + m
                if m == 0:
                    g.need(vm=[("W",t,uu) for uu in range(4)], lg=[("X",t,mm) for mm in range(4)])
                    nt = t + 1
                    bar = False
                    if nt < NT:
                        nl, nph, nkk, _, _ = step_info(nt)
                        if nkk == 0 and nph in (0, 2): bar = True
                        if nl == 0 and nph == 0 and nkk % GRP == 0:
                            g.need(vm=[("DMA", nkk+GRP-1)]); bar = True
                        if nl == 0 and nph == 2 and nkk == 0:
                            g.need(vm=[("DMA", 31)])
                    if bar:
                        g.drain_lg()
                        e("s_barrier")
                if m == 16:
                    g.need(vm=[("W",t,uu) for uu in range(4,8)])
                c, b = accmap[(p,mt,u)]
                src_c = r4(c,b)
                if l == 0 and h == 0 and kk == 0: src_c = "1.0"
                e(f"v_mfma_f32_16x16x32_bf16 {r4(c,b)}, {Wr(t,u)}, {Xr(t,mt)}, {src_c}")
                if mt == 3:
                    wload(t+D, u)
                    if u == 7: wadv()
                if m in (1, 5, 9, 13): xread(t+1, (m-1)//4)
                if l == 0 and ph <= 1 and m in o.dma_at: dma()
                while fi < len(fill) and fill[fi][0] <= gap:
                    fill[fi][1](); fi += 1
        while fi < len(fill):
            fill[fi][1](); fi += 1
    stamp()
    if not o.no_epi:
        e("s_nop 7")
        pre, ops = epi_plan(2, 1)
        for fn in ops: fn()
    stamp()
    if o.stamps:
        e("s_waitcnt vmcnt(0) lgkmcnt(0)")
        stamp(True)
        e("s_waitcnt lgkmcnt(0)")
        e(f"s_lshl_b32 s3, s2, 2"); e(f"s_add_u32 s3, s3, s{sWave}"); e("s_lshl_b32 s3, s3, 8")
        e(f"s_add_u32 s3, s3, 0x8000000")
        e(f"s_mov_b32 s{sWp+2}, 0x10000000")
        e("v_mov_b32 v1, 0")
        for i in range(nst[0]):
            for k in range(2): e(f"v_mov_b32 v{8+k}, s{ST+2*i+k}")
            e(f"buffer_store_dwordx2 v[8:9], v1, s[{sWp}:{sWp+3}], s3 offen offset:{8*i}")
            e("s_nop 1")
    e("s_endpgm")

def kd(name, vgpr, acc, sgpr):
    return f""".p2align 6
.amdhsa_kernel {name}
  .amdhsa_next_free_vgpr {vgpr}
  .amdhsa_next_free_sgpr {sgpr}
  .amdhsa_accum_offset {acc}
  .amdhsa_group_segment_fixed_size 0
  .amdhsa_kernarg_size 48
  .amdhsa_user_sgpr_count 2
  .amdhsa_user_sgpr_kernarg_segment_ptr 1
  .amdhsa_system_sgpr_workgroup_id_x 1
.end_amdhsa_kernel
"""

def main():
    ap = argparse.ArgumentParser()
    ap.add_argument("-o", default="out.s")
    ap.add_argument("--depth", type=int, default=4)
    ap.add_argument("--accmode", default="mixed")
    ap.add_argument("--stamps", action="store_true")
    ap.add_argument("--no_w", action="store_true")
    ap.add_argument("--half_w", action="store_true")
    ap.add_argument("--no_epi", action="store_true")
    ap.add_argument("--slotwait", action="store_true")
    ap.add_argument("--grp", type=int, default=4)
    ap.add_argument("--dma_init_groups", type=int, default=2)
    ap.add_argument("--dma_at", type=lambda s: [int(x) for x in s.split(",")], default=[2])
    o = ap.parse_args()
    g = G()
    gen_pre(g)
    gen_main(g, o)
    out = HDR
    out += "; @launch kernel=wt_kernel grid=(192,1,1) block=(256,1,1) lds=0\n"
    out += "; @launch kernel=standalone__dcn_v2_cross__recsys_kernel grid=(256,1,1) block=(256,1,1) lds=131072\n"
    out += '.amdgcn_target "amdgcn-amd-amdhsa--gfx950"\n.text\n'
    out += "\n".join(g.lines) + "\n"
    out += '.section .rodata,"a"\n'
    out += kd("wt_kernel", 80, 80, 32)
    out += kd("standalone__dcn_v2_cross__recsys_kernel", 512, 256, 102)
    open(o.o, "w").write(out)
    print(f"{o.o}: {g.n} lines, {len(out)} bytes", file=sys.stderr)

main()
```

```python
import sys
src, dst, mode, mult = sys.argv[1], sys.argv[2], sys.argv[3], int(sys.argv[4])
wv = int(sys.argv[5]) if len(sys.argv) > 5 else 401
last = 36
s = open(src).read()
lines = s.split("\n")
idx = max(i for i,l in enumerate(lines) if l.startswith("; @launch"))
lines[idx] = lines[idx].replace("; @launch ", "; @launch kernel=standalone__dcn_v2_cross__recsys_kernel ")
lines.insert(idx+1, "; @launch kernel=probe_kernel grid=(1,1,1) block=(64,1,1) lds=0")
if mode != "post0":
    lines.insert(idx, "; @launch kernel=t0_kernel grid=(1,1,1) block=(64,1,1) lds=0")
s = "\n".join(lines)
base = 0x8000000 + wv*512 + 256
T0 = 0x9000000
if mode == "all": a1, a2 = T0, None
elif mode == "pre": a1, a2 = T0, base
else: a1, a2 = base + 4*last, None
ld2 = f"v_mov_b32 v2, {a2}\nbuffer_load_dword v4, v2, s[4:7], 0 offen\n" if a2 else "v_mov_b32 v4, s12\n"
code = f""".globl t0_kernel
.p2align 8
.type t0_kernel,@function
t0_kernel:
s_memrealtime s[12:13]
s_cmp_ge_u32 s2, 1
s_cbranch_scc1 L_tdone
s_load_dwordx2 s[4:5], s[0:1], 40
s_waitcnt lgkmcnt(0)
s_mov_b32 s6, 0x10000000
s_mov_b32 s7, 0x20000
v_mov_b32 v1, {T0}
v_mov_b32 v2, s12
buffer_store_dword v2, v1, s[4:7], 0 offen
L_tdone:
s_endpgm
.globl probe_kernel
.p2align 8
.type probe_kernel,@function
probe_kernel:
s_memrealtime s[12:13]
s_cmp_ge_u32 s2, 1
s_cbranch_scc1 L_pdone
s_load_dwordx2 s[4:5], s[0:1], 40
s_waitcnt lgkmcnt(0)
s_mov_b32 s6, 0x10000000
s_mov_b32 s7, 0x20000
v_mov_b32 v1, {a1}
buffer_load_dword v3, v1, s[4:7], 0 offen
{ld2}s_waitcnt vmcnt(0)
v_sub_u32 v3, v4, v3
s_nop 1
v_readfirstlane_b32 s10, v3
s_nop 3
s_min_u32 s10, s10, 20000
s_mul_i32 s10, s10, {mult}
s_memrealtime s[12:13]
s_waitcnt lgkmcnt(0)
L_pspin:
s_memrealtime s[14:15]
s_waitcnt lgkmcnt(0)
s_sub_u32 s16, s14, s12
s_cmp_lt_u32 s16, s10
s_cbranch_scc1 L_pspin
L_pdone:
s_endpgm
"""
kd = ""
for n in ("probe_kernel", "t0_kernel"):
    kd += f""".p2align 6
.amdhsa_kernel {n}
  .amdhsa_next_free_vgpr 32
  .amdhsa_next_free_sgpr 32
  .amdhsa_accum_offset 32
  .amdhsa_group_segment_fixed_size 0
  .amdhsa_kernarg_size 48
  .amdhsa_user_sgpr_count 2
  .amdhsa_user_sgpr_kernarg_segment_ptr 1
  .amdhsa_system_sgpr_workgroup_id_x 1
.end_amdhsa_kernel
"""
s = s.replace('.section .rodata,"a"\n', code + '.section .rodata,"a"\n') + kd
open(dst, "w").write(s)
```
